```python
import torch

def _softmax(x, axis=-1):
    return torch.softmax(x, dim=axis)
def _gelu(x):
    return torch.nn.functional.gelu(x, approximate="tanh")
def _silu(x):
    return torch.nn.functional.silu(x)
def _sigmoid(x):
    return torch.sigmoid(x)
def _layernorm(x, axis=-1, eps=1e-5):
    m = x.mean(dim=axis, keepdim=True)
    v = x.var(dim=axis, keepdim=True, unbiased=False)
    return (x - m) / torch.sqrt(v + eps)
def _scatter_add(tgt, idx, src, axis=0):
    return tgt.clone().index_add_(axis, idx, src)
def _segment_sum(src, seg, n):
    out = torch.zeros((n,) + src.shape[1:], dtype=src.dtype)
    return out.index_add_(0, seg, src)
def _pad(x, pw):
    flat = tuple(v for pair in reversed(pw) for v in pair)
    return torch.nn.functional.pad(x, flat)

kernel_name = 'gated_mix__linear_kernel_hedgehog__grouped_kv_mqa__prompt'

def setup_inputs():

    _w = (lambda a: (lambda t: t.to(torch.bfloat16) if t.is_floating_point() else t)(torch.as_tensor(a)))
    def _A_setup():
        B, S, D, H = 1, 2048, 576, 32
        Dh = D // H
        return {
            "x": _w((lambda *s: torch.randn(*s, dtype=torch.bfloat16) * 0.05)(B, S, D)),
            "wqkv": _w((lambda *s: torch.randn(*s, dtype=torch.bfloat16) * 1.6)(D, 3 * D)),
            "w_phi": _w((lambda *s: torch.randn(*s, dtype=torch.bfloat16) * 1.6)(H, Dh, Dh) * (Dh ** -0.5)),
            "wo": _w((lambda *s: torch.randn(*s, dtype=torch.bfloat16) * 0.05)(D, D)),
        }
    _A_in = _A_setup()

    def _B_setup():
        B, S, D, H = 1, 2048, 576, 32
        Dh = D // H
        return {
            "x": _w((lambda *s: torch.randn(*s, dtype=torch.bfloat16) * 0.05)(B, S, D)),
            "wq": _w((lambda *s: torch.randn(*s, dtype=torch.bfloat16) * 1.6)(D, H * Dh)),
            "wk": _w((lambda *s: torch.randn(*s, dtype=torch.bfloat16) * 1.6)(D, Dh)),
            "wv": _w((lambda *s: torch.randn(*s, dtype=torch.bfloat16) * 0.05)(D, Dh)),
            "wo": _w((lambda *s: torch.randn(*s, dtype=torch.bfloat16) * 0.05)(H * Dh, D)),
        }
    _B_in = _B_setup()

    return {
        "A_x": _A_in["x"],
        "A_wqkv": _A_in["wqkv"],
        "A_w_phi": _A_in["w_phi"],
        "A_wo": _A_in["wo"],
        "B_x": _B_in["x"],
        "B_wq": _B_in["wq"],
        "B_wk": _B_in["wk"],
        "B_wv": _B_in["wv"],
        "B_wo": _B_in["wo"],
        "gate_w": _w((lambda *s: torch.randn(*s, dtype=torch.bfloat16) * 0.05)(576) * 16.0),
    }

def reference(A_x, A_wqkv, A_w_phi, A_wo, B_x, B_wq, B_wk, B_wv, B_wo, gate_w):
    def _A_ref(x, wqkv, w_phi, wo):
        B, S, D = x.shape
        H = 32; Dh = D // H
        qkv = (lambda x, *d: x.permute(*d))((x @ wqkv).reshape(B, S, 3, H, Dh), 2, 0, 3, 1, 4)
        q, k, v = qkv[0], qkv[1], qkv[2]
        pq = torch.einsum("bhsd,hdf->bhsf", q, w_phi)
        pk = torch.einsum("bhsd,hdf->bhsf", k, w_phi)
        phi_q = torch.concatenate([_softmax(pq, axis=-1), _softmax(-pq, axis=-1)], axis=-1)
        phi_k = torch.concatenate([_softmax(pk, axis=-1), _softmax(-pk, axis=-1)], axis=-1)
        kv = torch.einsum("bhsf,bhsd->bhfd", phi_k, v)
        z  = torch.einsum("bhsf->bhf", phi_k)
        num = torch.einsum("bhqf,bhfd->bhqd", phi_q, kv)
        den = torch.einsum("bhqf,bhf->bhq", phi_q, z)[..., None] + 1e-6
        o = num / den
        return (lambda x, *d: x.permute(*d))(o, 0, 2, 1, 3).reshape(B, S, D) @ wo

    def _B_ref(x, wq, wk, wv, wo):
        B, S, D = x.shape
        H = 32
        Dh = D // H
        q = (lambda x, *d: x.permute(*d))((x @ wq).reshape(B, S, H, Dh), 0, 2, 1, 3)
        k = x @ wk
        v = x @ wv
        scores = torch.einsum("bhqd,bkd->bhqk", q, k) * (Dh ** -0.5)
        p = _softmax(scores, axis=-1)
        o = torch.einsum("bhqk,bkd->bhqd", p, v)
        return (lambda x, *d: x.permute(*d))(o, 0, 2, 1, 3).reshape(B, S, H * Dh) @ wo

    x = A_x
    g = _sigmoid((x * gate_w).sum(-1, keepdims=True))
    a = _A_ref(x, A_wqkv, A_w_phi, A_wo)
    b = _B_ref(x, B_wq, B_wk, B_wv, B_wo)
    return g * a + (1 - g) * b
```

```python
import re

def _expand(tok):
    tok = tok.strip()
    neg = tok.startswith('-')
    if neg: tok = tok[1:]
    if tok.startswith('abs(') and tok.endswith(')'): tok = tok[4:-1]
    if tok.startswith('|') and tok.endswith('|'): tok = tok[1:-1]
    m = re.fullmatch(r'([vsa])(\d+)', tok)
    if m: return [(m.group(1), int(m.group(2)))]
    m = re.fullmatch(r'([vsa])\[(\d+):(\d+)\]', tok)
    if m: return [(m.group(1), i) for i in range(int(m.group(2)), int(m.group(3)) + 1)]
    if tok == 'vcc': return [('s', 'vcc_lo'), ('s', 'vcc_hi')]
    if tok in ('vcc_lo', 'vcc_hi'): return [('s', tok)]
    if tok == 'exec': return [('s', 'exec_lo'), ('s', 'exec_hi')]
    if tok in ('exec_lo', 'exec_hi', 'm0'): return [('s', tok)]
    return []

TRANS = ('v_exp_f32', 'v_log_f32', 'v_rcp_f32', 'v_rsq_f32', 'v_sqrt_f32', 'v_sin_f32', 'v_cos_f32', 'v_rcp_iflag_f32')

def mfma_passes(mn):
    if '32x32x4_2b' in mn or '32x32x1_2b' in mn: return 16
    if '16x16x4_4b' in mn: return 8
    if '4x4x4' in mn: return 2
    if '32x32' in mn: return 8
    if '16x16' in mn: return 4
    raise ValueError(mn)

class Ins:
    def __init__(self, text):
        self.text = text
        t = text.split(';')[0].strip()
        self.label = t.endswith(':')
        self.directive = t.startswith('.')
        self.mn = ''
        self.reads = set(); self.writes = set()
        self.kind = 'other'
        self.srcC = set(); self.srcAB = set(); self.store_data = set()
        if self.label or self.directive or not t: return
        parts = t.split(None, 1)
        mn = parts[0]; self.mn = mn
        rest = parts[1] if len(parts) > 1 else ''
        ops = []; depth = 0; cur = ''
        for ch in rest:
            if ch in '[(': depth += 1
            if ch in '])': depth -= 1
            if ch == ',' and depth == 0: ops.append(cur.strip()); cur = ''
            else: cur += ch
        if cur.strip(): ops.append(cur.strip())
        mods = ''
        if ops:
            last = ops[-1].split(None, 1)
            ops[-1] = last[0]
            mods = last[1] if len(last) > 1 else ''
        self.ops = ops; self.mods = mods
        E = lambda i: set(_expand(ops[i])) if i < len(ops) else set()
        allE = lambda a: set().union(*[E(i) for i in range(a, len(ops))]) if len(ops) > a else set()
        if mn.startswith('v_mfma') or mn.startswith('v_smfmac'):
            self.kind = 'mfma'; self.passes = mfma_passes(mn)
            self.writes = E(0)
            if mn.startswith('v_smfmac'):
                self.srcC = E(0); self.srcAB = E(1) | E(2) | E(3)
            else:
                self.srcC = E(3); self.srcAB = E(1) | E(2)
            self.reads = self.srcC | self.srcAB
        elif mn.startswith('v_'):
            self.kind = 'valu'
            if mn.startswith('v_cmp'):
                self.writes = E(0); self.reads = allE(1)
                if mn.startswith('v_cmpx'): self.writes |= set(_expand('exec'))
            elif mn.startswith('v_permlane') and 'swap' in mn:
                self.writes = E(0) | E(1); self.reads = E(0) | E(1)
            elif mn in ('v_add_co_u32', 'v_sub_co_u32', 'v_addc_co_u32', 'v_subb_co_u32', 'v_mad_u64_u32', 'v_div_scale_f32'):
                self.writes = E(0) | E(1); self.reads = allE(2)
            else:
                self.writes = E(0); self.reads = allE(1)
                if mn.startswith('v_fmac') or mn.startswith('v_dot2c') or mn == 'v_writelane_b32': self.reads |= E(0)
        elif mn.startswith('buffer_') or mn.startswith('global_') or mn.startswith('flat_'):
            self.kind = 'vmem'
            islds = (' lds' in ' ' + mods) or ('load_lds' in mn)
            self.ldsdma = islds
            if mn in ('buffer_wbl2', 'buffer_inv'): pass
            elif islds:
                self.reads = allE(0) | {('s', 'm0')}
            elif 'load' in mn:
                self.writes = E(0); self.reads = allE(1)
            elif 'store' in mn:
                self.reads = allE(0)
                d = E(0) if mn.startswith('buffer_') else E(1)
                if 'x3' in mn or 'x4' in mn: self.store_data = d
            elif 'atomic' in mn:
                self.reads = allE(0)
                if 'sc0' in mods: self.writes = E(0)
        elif mn.startswith('ds_'):
            self.kind = 'ds'
            if 'read' in mn or 'permute' in mn or 'swizzle' in mn or '_rtn' in mn:
                self.writes = E(0); self.reads = allE(1)
            else:
                self.reads = allE(0)
        elif mn.startswith('s_'):
            self.kind = 'salu'
            if mn.startswith('s_cmp') or mn.startswith('s_cbranch') or mn in ('s_branch', 's_waitcnt', 's_barrier', 's_nop', 's_endpgm', 's_setprio', 's_sleep'):
                self.reads = allE(0) if mn.startswith('s_cmp') else set()
            else:
                self.writes = E(0); self.reads = allE(1)
                if 'saveexec' in mn: self.writes |= set(_expand('exec'))
    def states(self):
        if self.label or self.directive or not self.mn: return 0
        if self.mn == 's_nop': return int(self.ops[0], 0) + 1
        return 1

XDL_RAW = {2: 5, 4: 8, 8: 12, 16: 20}
XDL_COV = {2: 4, 4: 6, 8: 10, 16: 18}
XDL_WARC = {2: 1, 4: 3, 8: 7, 16: 15}

def need(p, c):
    n = 0
    vw = {r for r in p.writes if r[0] in 'va'}
    sw = {r for r in p.writes if r[0] == 's'}
    if p.kind == 'valu':
        if c.kind == 'mfma' and vw & c.reads: n = max(n, 2)
        if c.kind == 'valu':
            if p.mn in TRANS and c.mn not in TRANS and vw & c.reads: n = max(n, 1)
            if c.mn.startswith('v_permlane') and vw & c.reads: n = max(n, 2)
            if c.mn in ('v_readfirstlane_b32', 'v_readlane_b32') and vw & c.reads: n = max(n, 1)
            if sw & c.reads: n = max(n, 4 if c.mn in ('v_readlane_b32', 'v_writelane_b32') else 2)
            if 'dpp' in c.mn or 'row_' in c.mods or 'quad_perm' in c.mods:
                if vw & c.reads: n = max(n, 2)
        if c.kind == 'vmem' and sw & c.reads: n = max(n, 5)
        if c.kind == 'salu' and sw & c.reads: n = max(n, 1)
    if p.kind == 'mfma':
        if c.kind == 'mfma':
            if vw & c.srcAB: n = max(n, XDL_RAW[p.passes])
            if vw & c.srcC:
                if vw == c.srcC and p.passes == c.passes: n = max(n, 2 if p.passes == 2 else 0)
                else: n = max(n, XDL_COV[p.passes])
            elif vw & c.writes:
                if p.passes > c.passes: n = max(n, XDL_COV[p.passes])
        elif c.kind in ('valu', 'vmem', 'ds'):
            if vw & (c.reads | c.writes): n = max(n, XDL_RAW[p.passes])
            if c.kind == 'valu' and p.srcC & c.writes: n = max(n, XDL_WARC[p.passes])
    if p.kind == 'salu' and ('s', 'm0') in p.writes and c.kind == 'vmem' and getattr(c, 'ldsdma', False): n = max(n, 1)
    if p.kind == 'vmem' and p.store_data and (p.store_data & c.writes): n = max(n, 2 if c.kind == 'valu' else 1)
    return n

class Asm:
    def __init__(self):
        self.ins = []
        self.uid = 0
    def __call__(self, text):
        for line in text.split('\n'):
            line = line.strip()
            if line: self.ins.append(Ins(line))
    def label(self, base):
        self.uid += 1
        return f"L_{base}_{self.uid}"
    def fix_hazards(self, verbose=False):
        out = []
        W = 24
        for c in self.ins:
            if c.mn:
                dist = 0; req = 0
                for p in reversed(out):
                    if p.mn == 's_endpgm' or p.mn == 's_branch': break
                    if p.mn:
                        r = need(p, c) - dist
                        if r > req: req = r; why = p
                        dist += p.states()
                        if dist > W: break
                if req > 0:
                    if verbose: print(f"hazard: +{req} nop between [{why.text}] and [{c.text}]")
                    while req > 0:
                        k = min(req, 16); out.append(Ins(f"s_nop {k-1}")); req -= k
            out.append(c)
        self.ins = out
        pos = {}
        for i, x in enumerate(out):
            if x.label: pos[x.text.split(':')[0].strip()] = i
        for i, b in enumerate(out):
            if b.mn.startswith('s_cbranch') or b.mn == 's_branch':
                tgt = pos.get(b.ops[0])
                if tgt is None: continue
                d1 = 0
                prods = []
                j = i
                while j >= 0 and d1 <= W:
                    if out[j].mn:
                        prods.append((out[j], d1)); d1 += out[j].states()
                        if j < i and out[j].mn in ('s_branch', 's_endpgm'): break
                    j -= 1
                d2 = 0
                k = tgt
                while k < len(out) and d2 <= W:
                    c = out[k]
                    if c.mn:
                        for p, dp in prods:
                            if p is b: continue
                            if need(p, c) > dp + d2:
                                raise RuntimeError(f"branch-path hazard via [{b.text}]: [{p.text}] -> [{c.text}] need {need(p,c)} have {dp+d2}")
                        d2 += c.states()
                        if c.mn in ('s_branch', 's_endpgm'): break
                    k += 1
    def text(self):
        return "\n".join((x.text if (x.label or x.directive) else "    " + x.text) for x in self.ins) + "\n"
    def max_regs(self):
        mv = ms = ma = -1
        for x in self.ins:
            for r in x.reads | x.writes:
                if isinstance(r[1], int):
                    if r[0] == 'v': mv = max(mv, r[1])
                    if r[0] == 's': ms = max(ms, r[1])
                    if r[0] == 'a': ma = max(ma, r[1])
        return mv, ms, ma

def vr(a, n=1):
    return f"v{a}" if n == 1 else f"v[{a}:{a+n-1}]"
def sr(a, n=1):
    return f"s{a}" if n == 1 else f"s[{a}:{a+n-1}]"
```

```python
import sys, struct
from asmlib import *

NAME = "gated_mix__linear_kernel_hedgehog__grouped_kv_mqa__prompt"
def f2u(x): return struct.unpack("<I", struct.pack("<f", x))[0]
LOG2E = 1.4426950408889634
QSCALE = (18 ** -0.5) * LOG2E

WS_KV   = 0
KVT     = 2368
WS_G    = 0x28000
WS_QF   = 0x30000
WS_PHIQ = WS_QF + 64*16*2304
WS_KVP  = WS_PHIQ + 64*32*2304
WS_OF   = WS_KVP + 16*32*2816
WS_END  = WS_OF + 2*64*36*1024
OOB = 0x40000000

def load_args(a):
    a("s_load_dwordx8 s[4:11], s[0:1], 0")
    a("s_load_dwordx8 s[12:19], s[0:1], 32")
    a("s_load_dwordx8 s[20:27], s[0:1], 64")
    a("s_load_dwordx2 s[28:29], s[0:1], 96")
P_X, P_WQKV, P_WPHI, P_WOA, P_WQ, P_WK, P_WV, P_WOB, P_GATE, P_OUT, P_DBG, P_WS = 4, 6, 8, 10, 14, 16, 18, 20, 22, 24, 26, 28
def srd(a, d, p, nbytes):
    a(f"s_mov_b32 s{d}, s{p}")
    a(f"s_and_b32 s{d+1}, s{p+1}, 0xffff")
    a(f"s_mov_b32 s{d+2}, {nbytes}")
    a(f"s_mov_b32 s{d+3}, 0x00020000")

SLOT = 36864; WOFF = 16384; GOFF = 4*SLOT
def k1(a):
    R_X, R_PHI, R_GATE, R_WS = 32, 36, 40, 44
    sW, sRT, sHP, sI, sG, sROLE, sCD, sCC = 48, 49, 50, 51, 52, 53, 54, 55
    sXO, sT0, sT1, sT2, sT3 = 56, 57, 58, 59, 60
    sXB, sXS, sYB, sKB, sKS = 62, 64, 66, 68, 70
    sGM = 72
    sXM0, sWM0 = 74, 75
    end = "L_k1_end"
    a("s_cmp_ge_u32 s2, 256")
    a(f"s_cbranch_scc1 {end}")
    load_args(a)
    vL = 1
    a(f"v_and_b32 v{vL}, 63, v0")
    a("v_lshrrev_b32 v2, 6, v0")
    a(f"v_readfirstlane_b32 s{sW}, v2")
    a(f"s_and_b32 s{sT0}, s2, 7")
    a(f"s_lshr_b32 s{sT1}, s2, 3")
    a(f"s_lshr_b32 s{sI}, s{sT0}, 2")
    a(f"s_lshl_b32 s{sI}, s{sI}, 3")
    a(f"s_and_b32 s{sT2}, s{sT1}, 7")
    a(f"s_or_b32 s{sI}, s{sI}, s{sT2}")
    a(f"s_and_b32 s{sG}, s{sT0}, 1")
    a(f"s_lshl_b32 s{sG}, s{sG}, 2")
    a(f"s_lshr_b32 s{sT3}, s{sT1}, 3")
    a(f"s_or_b32 s{sG}, s{sG}, s{sT3}")
    a(f"s_bfe_u32 s{sROLE}, s{sT0}, 0x10001")
    a(f"s_lshl_b32 s{sT3}, s{sT3}, 1")
    a(f"s_add_u32 s{sCD}, s{sT2}, s{sT3}")
    a(f"s_cmp_ge_u32 s{sCD}, 9")
    a(f"s_cselect_b32 s{sT3}, 9, 0")
    a(f"s_sub_u32 s{sCD}, s{sCD}, s{sT3}")
    a(f"s_mov_b32 s{sCC}, s{sCD}")
    a(f"s_and_b32 s{sRT}, s{sW}, 3")
    a(f"s_lshr_b32 s{sHP}, s{sW}, 2")
    vH, vR32 = 2, 3
    a(f"v_lshrrev_b32 v{vH}, 5, v{vL}")
    a(f"v_and_b32 v{vR32}, 31, v{vL}")
    vXD = 4
    for t in range(2):
        a(f"v_lshrrev_b32 v10, 3, v{vL}")
        a(f"v_add_u32 v10, {8*t}, v10")
        a(f"v_mul_u32_u24 v10, 1152, v10")
        a(f"v_lshrrev_b32 v11, 4, v{vL}")
        a(f"v_add_u32 v11, {4*t}, v11")
        a(f"v_and_b32 v12, 7, v{vL}")
        a(f"v_xor_b32 v11, v11, v12")
        a(f"v_lshl_add_u32 v{vXD+t}, v11, 4, v10")
    vXA = 16
    a(f"s_lshl_b32 s{sT0}, s{sRT}, 12")
    a(f"v_lshlrev_b32 v10, 7, v{vR32}")
    a(f"v_add_u32 v10, s{sT0}, v10")
    a(f"v_bfe_u32 v11, v{vR32}, 1, 3")
    a(f"v_xor_b32 v11, v11, v{vH}")
    for s in range(4):
        a(f"v_xor_b32 v12, {2*s}, v11")
        a(f"v_lshl_add_u32 v{vXA+s}, v12, 4, v10")
        a(f"v_add_u32 v{vXA+4+s}, {2*SLOT}, v{vXA+s}")
    vTA, vLA, vGA = 24, 26, 28
    a(f"v_bfe_u32 v10, v{vL}, 2, 2")
    a(f"v_lshl_add_u32 v10, v{vH}, 3, v10")
    a(f"v_mul_u32_u24 v10, 320, v10")
    a(f"v_add_u32 v10, {WOFF}, v10")
    a(f"v_bfe_u32 v11, v{vL}, 4, 1")
    a(f"v_and_b32 v12, 3, v{vL}")
    a(f"s_mul_i32 s{sT0}, s{sHP}, 72")
    a(f"v_mul_u32_u24 v13, 160, v11")
    a(f"v_lshl_add_u32 v13, v12, 3, v13")
    a(f"v_add3_u32 v{vTA}, v10, v13, s{sT0}")
    a(f"v_add_u32 v{vTA+1}, {2*SLOT}, v{vTA}")
    a(f"v_lshrrev_b32 v13, 1, v12")
    a(f"v_mul_u32_u24 v13, 160, v13")
    a(f"s_add_u32 s{sT0}, s{sT0}, 32")
    a(f"v_add_u32 v13, s{sT0}, v13")
    a(f"s_lshl_b32 s{sT0}, s{sHP}, 3")
    a(f"s_add_u32 s{sT0}, s{sT0}, 144")
    a(f"v_mov_b32 v14, s{sT0}")
    a(f"v_cmp_eq_u32 vcc, 1, v11")
    a(f"v_cndmask_b32 v13, v13, v14, vcc")
    a(f"v_add_u32 v{vLA}, v10, v13")
    a(f"v_add_u32 v{vLA+1}, {2*SLOT}, v{vLA}")
    vGB = 29
    a(f"v_lshlrev_b32 v{vGB}, 4, v{vH}")
    a(f"v_add_u32 v{vGB}, {GOFF}, v{vGB}")
    a(f"s_mov_b32 s{sGM}, 0xff000000")
    a(f"s_mov_b32 s{sGM+1}, 0xff000000")
    a(f"v_and_b32 v10, 3, v{vR32}")
    a(f"v_lshrrev_b32 v11, 3, v{vR32}")
    a(f"v_lshl_add_u32 v10, v11, 2, v10")
    a(f"v_bfe_u32 v11, v{vR32}, 2, 1")
    a(f"v_mul_u32_u24 v11, 9, v11")
    a(f"v_add_u32 v11, v11, v10")
    a(f"v_lshlrev_b32 v11, 1, v11")
    a(f"v_mov_b32 v12, {OOB}")
    a(f"v_cmp_gt_u32 vcc, 9, v10")
    a(f"v_cndmask_b32 v11, v12, v11, vcc")
    a(f"v_mul_u32_u24 v13, 144, v{vH}")
    a(f"v_add_u32 v30, v11, v13")
    a(f"v_cmp_eq_u32 vcc, 0, v{vH}")
    a(f"v_cndmask_b32 v31, v12, v11, vcc")
    a(f"v_cndmask_b32 v32, v11, v12, vcc")
    a("s_waitcnt lgkmcnt(0)")
    srd(a, R_X, P_X, 2048*1152)
    srd(a, R_PHI, P_WPHI, 32*648)
    srd(a, R_GATE, P_GATE, 1152)
    srd(a, R_WS, P_WS, WS_END)
    a(f"s_lshl_b32 s{sXO}, s{sI}, 7")
    a(f"s_lshl_b32 s{sT0}, s{sW}, 4")
    a(f"s_add_u32 s{sXO}, s{sXO}, s{sT0}")
    a(f"s_mul_i32 s{sXO}, s{sXO}, 1152")
    a(f"s_lshl_b32 s{sXM0}, s{sW}, 11")
    a(f"s_lshl_b32 s{sWM0}, s{sW}, 10")
    a(f"s_add_u32 s{sWM0}, s{sWM0}, {WOFF}")
    a(f"s_mul_i32 s{sT0}, s{sG}, 144")
    a(f"s_cmp_eq_u32 s{sROLE}, 0")
    a(f"s_cselect_b32 s{sXB}, s{P_WQ}, s{P_WQKV}")
    a(f"s_cselect_b32 s{sXB+1}, s{P_WQ+1}, s{P_WQKV+1}")
    a(f"s_movk_i32 s{sXS}, 3456")
    a(f"s_cselect_b32 s{sXS}, 1152, s{sXS}")
    a(f"s_cselect_b32 s{sT1}, 0, 2304")
    a(f"s_cselect_b32 s{sT2}, 0, 1152")
    a(f"s_add_u32 s{sT1}, s{sT1}, s{sT0}")
    a(f"s_add_u32 s{sT2}, s{sT2}, s{sT0}")
    a(f"s_add_u32 s{sXB}, s{sXB}, s{sT1}")
    a(f"s_addc_u32 s{sXB+1}, s{sXB+1}, 0")
    a(f"s_add_u32 s{sYB}, s{P_WQKV}, s{sT2}")
    a(f"s_addc_u32 s{sYB+1}, s{P_WQKV+1}, 0")
    a(f"s_cmp_lt_u32 s{sG}, 3")
    a(f"s_cselect_b32 s{sKB}, s{P_WK}, s{P_WV}")
    a(f"s_cselect_b32 s{sKB+1}, s{P_WK+1}, s{P_WV+1}")
    a(f"s_cselect_b32 s{sT1}, 0, 3")
    a(f"s_sub_u32 s{sT1}, s{sG}, s{sT1}")
    a(f"s_lshl_b32 s{sT2}, s{sT1}, 4")
    a(f"s_min_u32 s{sT2}, s{sT2}, 20")
    a(f"s_add_u32 s{sKB}, s{sKB}, s{sT2}")
    a(f"s_addc_u32 s{sKB+1}, s{sKB+1}, 0")
    a(f"s_add_u32 s{sT2}, s{sXB}, 128")
    a(f"s_addc_u32 s{sT3}, s{sXB+1}, 0")
    a(f"s_lshl_b32 s{sT0}, s{sROLE}, 3")
    a(f"s_add_u32 s{sT0}, s{sT0}, s{sG}")
    a(f"s_cmp_lt_u32 s{sT0}, 6")
    a(f"s_cselect_b32 s{sKB}, s{sKB}, s{sT2}")
    a(f"s_cselect_b32 s{sKB+1}, s{sKB+1}, s{sT3}")
    a(f"s_cselect_b32 s{sKS}, 36, s{sXS}")
    a(f"s_lshl_b32 s{sT0}, s{sW}, 8")
    a(f"s_add_u32 s{sT1}, s{sT0}, {GOFF}")
    a(f"s_mov_b32 m0, s{sT1}")
    a(f"v_lshlrev_b32 v10, 2, v{vL}")
    a(f"buffer_load_dword v10, s[{R_GATE}:{R_GATE+3}], s{sT0} offen lds")
    vWB, vWS, vWA = 34, 40, 44
    a(f"v_mov_b32 v50, s{sXB}"); a(f"v_mov_b32 v51, s{sXB+1}"); a(f"v_mov_b32 v52, s{sXS}")
    a(f"v_mov_b32 v53, s{sYB}"); a(f"v_mov_b32 v54, s{sYB+1}"); a(f"v_mov_b32 v55, 3456")
    a(f"v_mov_b32 v56, s{sKB}"); a(f"v_mov_b32 v57, s{sKB+1}"); a(f"v_mov_b32 v58, s{sKS}")
    a(f"s_lshl_b32 s{sT0}, s{sW}, 6")
    for q in range(3):
        a(f"v_add_u32 v10, s{sT0}, v{vL}")
        if q: a(f"v_add_u32 v10, {512*q}, v10")
        a(f"v_mul_u32_u24 v11, 3277, v10")
        a(f"v_lshrrev_b32 v11, 16, v11")
        a(f"v_mul_u32_u24 v12, 20, v11")
        a(f"v_sub_u32 v12, v10, v12")
        a(f"v_cmp_lt_u32 vcc, 9, v12")
        a(f"v_cndmask_b32 v60, v50, v53, vcc")
        a(f"v_cndmask_b32 v61, v51, v54, vcc")
        a(f"v_cndmask_b32 v62, v52, v55, vcc")
        a(f"v_subrev_u32 v13, 10, v12")
        a(f"v_cndmask_b32 v13, v12, v13, vcc")
        a(f"v_min_u32 v13, 8, v13")
        a(f"v_lshlrev_b32 v13, 4, v13")
        a(f"v_cmp_eq_u32 vcc, 9, v12")
        a(f"v_cndmask_b32 v60, v60, v56, vcc")
        a(f"v_cndmask_b32 v61, v61, v57, vcc")
        a(f"v_cndmask_b32 v62, v62, v58, vcc")
        a(f"v_cndmask_b32 v13, v13, 0, vcc")
        a(f"v_min_u32 v11, 63, v11")
        a(f"v_mad_u32_u24 v13, v11, v62, v13")
        a(f"v_add_co_u32 v{vWB+2*q}, vcc, v60, v13")
        a(f"v_addc_co_u32 v{vWB+2*q+1}, vcc, 0, v61, vcc")
        a(f"v_lshlrev_b32 v{vWS+q}, 6, v62")
    def issue_chunk(n):
        slot = (n & 3) * SLOT
        a(f"s_lshl_b32 s{sT0}, s{sCD}, 7")
        a(f"s_add_u32 s{sT0}, s{sT0}, s{sXO}")
        for q in range(3):
            a(f"v_mad_u64_u32 v[{vWA+2*q}:{vWA+2*q+1}], vcc, s{sCD}, v{vWS+q}, v[{vWB+2*q}:{vWB+2*q+1}]")
        for t in range(2):
            a(f"s_add_u32 m0, s{sXM0}, {slot + 1024*t}")
            a(f"buffer_load_dwordx4 v{vXD+t}, s[{R_X}:{R_X+3}], s{sT0} offen lds")
        for q in range(2):
            a(f"s_add_u32 m0, s{sWM0}, {slot + 8192*q}")
            a(f"global_load_lds_dwordx4 v[{vWA+2*q}:{vWA+2*q+1}], off")
        lab = a.label("skipw")
        a(f"s_cmp_lg_u32 s{sHP}, 0")
        a(f"s_cbranch_scc1 {lab}")
        a(f"s_add_u32 m0, s{sWM0}, {slot + 16384}")
        a(f"global_load_lds_dwordx4 v[{vWA+4}:{vWA+5}], off")
        a(f"{lab}:")
        a(f"s_add_u32 s{sCD}, s{sCD}, 1")
        a(f"s_cmp_eq_u32 s{sCD}, 9")
        a(f"s_cselect_b32 s{sCD}, 0, s{sCD}")
    vWP = 64
    a(f"s_lshl_b32 s{sT1}, s{sG}, 1")
    a(f"s_add_u32 s{sT1}, s{sT1}, s{sHP}")
    a(f"s_mul_i32 s{sT1}, s{sT1}, 1296")
    issue_chunk(0)
    for o in range(2):
        for j in range(8):
            off = ((j & 3) + 8*(j >> 2)) * 36 + o * (72 + 648)
            a(f"buffer_load_ushort v{vWP+8*o+j}, v30, s[{R_PHI}:{R_PHI+3}], s{sT1} offen offset:{off}")
    for j in range(4):
        a(f"buffer_load_ushort v{vWP+16+j}, v{31+(j>>1)}, s[{R_PHI}:{R_PHI+3}], s{sT1} offen offset:{576+36*j}")
    for n in (1, 2, 3): issue_chunk(n)
    T0, T1, LL = 96, 112, 128
    FR = (144, 160)
    def reads(t):
        n, s = t >> 2, t & 3
        f = FR[t & 1]; st = (n >> 1) & 1; so = (n & 1) * SLOT
        a(f"ds_read_b128 {vr(f,4)}, v{vXA+4*st+s} offset:{so}")
        for u in range(2):
            a(f"ds_read_b64_tr_b16 {vr(f+4+2*u,2)}, v{vTA+st} offset:{so+(16*s+4*u)*320}")
        for u in range(2):
            a(f"ds_read_b64_tr_b16 {vr(f+8+2*u,2)}, v{vTA+st} offset:{so+(16*s+4*u)*320+40}")
        for u in range(2):
            a(f"ds_read_b64_tr_b16 {vr(f+12+2*u,2)}, v{vLA+st} offset:{so+(16*s+4*u)*320}")
        a(f"s_mov_b64 exec, s[{sGM}:{sGM+1}]")
        a(f"ds_read_b128 {vr(f+12,4)}, v{vGA} offset:{32*s}")
        a("s_mov_b64 exec, -1")
    def mfmas(t):
        f = FR[t & 1]
        for k, acc in enumerate((T0, T1, LL)):
            c = "0" if t == 0 else vr(acc, 16)
            a(f"v_mfma_f32_32x32x16_bf16 {vr(acc,16)}, {vr(f+4+4*k,4)}, {vr(f,4)}, {c}")
    def chunk_sync(n):
        inflight = {0: 3, 7: 1, 8: 0}.get(n, 2)
        extra = 20 if n == 0 else 0
        if inflight:
            lab = a.label("vw")
            a(f"s_waitcnt vmcnt({5*inflight+extra}) lgkmcnt(0)")
            a(f"s_cmp_eq_u32 s{sHP}, 0")
            a(f"s_cbranch_scc1 {lab}")
            a(f"s_waitcnt vmcnt({4*inflight+extra})")
            a(f"{lab}:")
        else:
            a("s_waitcnt vmcnt(0) lgkmcnt(0)")
        a("s_barrier")
        a(f"s_lshl_b32 s{sT0}, s{sCC}, 7")
        a(f"v_add_u32 v{vGA}, s{sT0}, v{vGB}")
        a(f"s_add_u32 s{sCC}, s{sCC}, 1")
        a(f"s_cmp_eq_u32 s{sCC}, 9")
        a(f"s_cselect_b32 s{sCC}, 0, s{sCC}")
    chunk_sync(0)
    reads(0)
    for t in range(36):
        if t + 1 < 36:
            if (t + 1) & 3 == 0:
                n = (t + 1) >> 2
                chunk_sync(n)
                reads(t + 1)
                mfmas(t)
                if n + 3 < 9: issue_chunk(n + 3)
                continue
            reads(t + 1)
            a("s_waitcnt lgkmcnt(8)")
        else:
            a("s_waitcnt lgkmcnt(0)")
        mfmas(t)
    for k in range(10):
        a(f"v_lshl_or_b32 v{84+k}, v{vWP+2*k+1}, 16, v{vWP+2*k}")
    for k in range(4): a(f"v_cvt_pk_bf16_f32 v{64+k}, v{T0+8+2*k}, v{T0+9+2*k}")
    for k in range(4): a(f"v_cvt_pk_bf16_f32 v{68+k}, v{T1+8+2*k}, v{T1+9+2*k}")
    for k in range(2): a(f"v_cvt_pk_bf16_f32 v{72+k}, v{LL+4+2*k}, v{LL+5+2*k}")
    PQ = 144
    a(f"v_mfma_f32_32x32x16_bf16 {vr(PQ,16)}, v[84:87], v[64:67], 0")
    a(f"v_mfma_f32_32x32x16_bf16 {vr(PQ+16,16)}, v[88:91], v[68:71], 0")
    vLC = 74
    a(f"v_mov_b32 v{vLC}, {hex(f2u(LOG2E))}")
    a(f"v_mov_b32 v{vLC+1}, {hex(f2u(-LOG2E))}")
    a(f"v_cmp_eq_u32 s[76:77], 1, v{vH}")
    a(f"v_mfma_f32_32x32x4_2b_bf16 {vr(PQ,32)}, v[92:93], v[72:73], {vr(PQ,32)}")
    a(f"s_cmp_eq_u32 s{sROLE}, 0")
    a(f"s_cselect_b32 s78, {hex(f2u(QSCALE))}, 1.0")
    a(f"s_mov_b32 s79, s78")
    for base in (T0, T0+2, T0+4, T0+6, T1, T1+2, T1+4, T1+6, LL, LL+2):
        a(f"v_pk_mul_f32 {vr(base,2)}, {vr(base,2)}, s[78:79]")
    XE, XO, XC = 76, 80, 94
    for k in range(4): a(f"v_cvt_pk_bf16_f32 v{XE+k}, v{T0+2*k}, v{T0+1+2*k}")
    for k in range(4): a(f"v_cvt_pk_bf16_f32 v{XO+k}, v{T1+2*k}, v{T1+1+2*k}")
    for k in range(2): a(f"v_cvt_pk_bf16_f32 v{XC+k}, v{LL+2*k}, v{LL+1+2*k}")
    PH = (96, 108)
    for o in range(2):
        p = PQ + 16*o; E = 176 + 18*o; m = 212 + 8*o
        a(f"v_max3_f32 v{m}, v{p}, v{p+1}, v{p+2}")
        a(f"v_min3_f32 v{m+1}, v{p}, v{p+1}, v{p+2}")
        for k in (3, 5, 7):
            a(f"v_max3_f32 v{m}, v{m}, v{p+k}, v{p+k+1}")
            a(f"v_min3_f32 v{m+1}, v{m+1}, v{p+k}, v{p+k+1}")
        a(f"v_mov_b32 v{m+2}, v{m}")
        a(f"v_mov_b32 v{m+3}, v{m+1}")
        a(f"v_permlane32_swap_b32 v{m}, v{m+2}")
        a(f"v_permlane32_swap_b32 v{m+1}, v{m+3}")
        a(f"v_max_f32 v{m}, v{m}, v{m+2}")
        a(f"v_min_f32 v{m+1}, v{m+1}, v{m+3}")
        a(f"v_pk_mul_f32 {vr(m,2)}, {vr(m,2)}, {vr(vLC,2)} op_sel:[0,1] op_sel_hi:[1,0]")
        for k in range(9):
            src = (p + k) & ~1; hi = (p + k) & 1
            a(f"v_pk_fma_f32 {vr(E+2*k,2)}, {vr(src,2)}, {vr(vLC,2)}, {vr(m,2)} op_sel:[{hi},0,0] op_sel_hi:[{hi},1,1]")
        for k in range(18): a(f"v_exp_f32 v{E+k}, v{E+k}")
        a(f"v_pk_add_f32 {vr(m+2,2)}, {vr(E,2)}, {vr(E+2,2)}")
        a(f"v_pk_add_f32 {vr(m+4,2)}, {vr(E+4,2)}, {vr(E+6,2)}")
        for k in (4, 6):
            a(f"v_pk_add_f32 {vr(m+2,2)}, {vr(m+2,2)}, {vr(E+2*k,2)}")
            a(f"v_pk_add_f32 {vr(m+4,2)}, {vr(m+4,2)}, {vr(E+2*k+2,2)}")
        a(f"v_pk_add_f32 {vr(m+2,2)}, {vr(m+2,2)}, {vr(E+16,2)}")
        a(f"v_pk_add_f32 {vr(m+2,2)}, {vr(m+2,2)}, {vr(m+4,2)}")
        a(f"v_mov_b32 v{m+4}, v{m+2}")
        a(f"v_mov_b32 v{m+5}, v{m+3}")
        a(f"v_permlane32_swap_b32 v{m+2}, v{m+4}")
        a(f"v_permlane32_swap_b32 v{m+3}, v{m+5}")
        a(f"v_pk_add_f32 {vr(m+2,2)}, {vr(m+2,2)}, {vr(m+4,2)}")
        a(f"v_rcp_f32 v{m+2}, v{m+2}")
        a(f"v_rcp_f32 v{m+3}, v{m+3}")
        for k in range(9): a(f"v_pk_mul_f32 {vr(E+2*k,2)}, {vr(E+2*k,2)}, {vr(m+2,2)}")
        for k in range(9): a(f"v_cvt_pk_bf16_f32 v{PH[o]+k}, v{E+2*k}, v{E+2*k+1}")
    a(f"s_lshl_b32 s80, s{sI}, 2")
    a(f"s_add_u32 s80, s80, s{sRT}")
    a(f"s_lshl_b32 s81, s{sG}, 1")
    a(f"s_add_u32 s81, s81, s{sHP}")
    a(f"v_lshlrev_b32 v10, 4, v{vL}")
    a(f"v_lshlrev_b32 v11, 2, v{vL}")
    a(f"s_cmp_lg_u32 s{sROLE}, 0")
    a("s_cbranch_scc1 L_k1_kvrole")
    a(f"v_mov_b32 v120, v{XC+1}")
    a(f"v_mov_b32 v121, v{XO}")
    a(f"v_mov_b32 v123, v{XO+2}")
    a(f"v_permlane32_swap_b32 v120, v{XO+1}")
    a(f"v_permlane32_swap_b32 v{XO+1}, v{XO+3}")
    a(f"v_cndmask_b32 v122, v{XO+3}, v{XO+1}, s[76:77]")
    a(f"v_cndmask_b32 v124, v{XC}, v{XO+3}, s[76:77]")
    a(f"s_lshl_b32 s82, s80, 4")
    a(f"s_add_u32 s82, s82, s81")
    a(f"s_mul_i32 s83, s82, 2304")
    a(f"s_add_u32 s83, s83, {WS_QF}")
    a(f"buffer_store_dwordx4 {vr(XE,4)}, v10, s[{R_WS}:{R_WS+3}], s83 offen")
    a(f"buffer_store_dwordx4 v[120:123], v10, s[{R_WS}:{R_WS+3}], s83 offen offset:1024")
    a(f"buffer_store_dword v124, v11, s[{R_WS}:{R_WS+3}], s83 offen offset:2048")
    a(f"s_mul_i32 s83, s82, 4608")
    a(f"s_add_u32 s83, s83, {WS_PHIQ}")
    for o in range(2):
        a(f"buffer_store_dwordx4 {vr(PH[o],4)}, v10, s[{R_WS}:{R_WS+3}], s83 offen")
        a(f"buffer_store_dwordx4 {vr(PH[o]+4,4)}, v10, s[{R_WS}:{R_WS+3}], s83 offen offset:1024")
        a(f"buffer_store_dword v{PH[o]+8}, v11, s[{R_WS}:{R_WS+3}], s83 offen offset:2048")
        if o == 0: a(f"s_add_u32 s83, s83, 2304")
    a(f"v_cvt_pk_bf16_f32 v126, v{LL+8}, v{LL+9}")
    a(f"v_cvt_pk_bf16_f32 v127, v{LL+10}, v{LL+11}")
    a(f"s_mul_i32 s83, s80, {KVT}")
    a(f"s_cmp_eq_u32 s{sG}, 6")
    a("s_cbranch_scc1 L_k1_gate")
    a(f"s_cmp_gt_u32 s{sG}, 5")
    a(f"s_cbranch_scc1 {end}")
    a(f"s_cmp_gt_u32 s{sG}, 2")
    a("s_cbranch_scc1 L_k1_vcols")
    a(f"s_mov_b32 exec_hi, 0")
    a(f"s_cmp_eq_u32 s{sG}, 2")
    a("s_cbranch_scc1 L_k1_kx")
    a(f"s_lshl_b32 s84, s{sHP}, 9")
    a(f"s_lshl_b32 s85, s{sG}, 3")
    a(f"s_add_u32 s84, s84, s85")
    a(f"s_add_u32 s83, s83, s84")
    a(f"buffer_store_dwordx2 v[126:127], v10, s[{R_WS}:{R_WS+3}], s83 offen")
    a(f"s_branch {end}")
    a("L_k1_kx:")
    a(f"s_cmp_eq_u32 s{sHP}, 0")
    a(f"s_cbranch_scc1 {end}")
    a(f"buffer_store_dword v127, v11, s[{R_WS}:{R_WS+3}], s83 offen offset:1024")
    a(f"s_branch {end}")
    a("L_k1_vcols:")
    a(f"v_lshrrev_b32 v12, 3, v{vR32}")
    a(f"v_mul_u32_u24 v12, 304, v12")
    a(f"v_and_b32 v13, 7, v{vR32}")
    a(f"v_lshl_add_u32 v12, v13, 1, v12")
    a(f"v_cndmask_b32 v14, v126, v127, s[76:77]")
    a(f"s_cmp_eq_u32 s{sG}, 5")
    a("s_cbranch_scc1 L_k1_vx")
    a(f"v_lshl_add_u32 v12, v{vH}, 5, v12")
    a(f"s_sub_u32 s84, s{sG}, 3")
    a(f"s_lshl_b32 s84, s84, 1")
    a(f"s_add_u32 s84, s84, s{sHP}")
    a(f"s_lshl_b32 s84, s84, 6")
    a(f"s_add_u32 s83, s83, s84")
    a(f"buffer_store_short v14, v12, s[{R_WS}:{R_WS+3}], s83 offen offset:1152")
    a(f"buffer_store_short_d16_hi v14, v12, s[{R_WS}:{R_WS+3}], s83 offen offset:1168")
    a(f"s_branch {end}")
    a("L_k1_vx:")
    a(f"s_cmp_eq_u32 s{sHP}, 0")
    a(f"s_cbranch_scc1 {end}")
    a(f"s_mov_b32 exec_hi, 0")
    a(f"v_mov_b32 v15, 0x3f80")
    a(f"buffer_store_short v127, v12, s[{R_WS}:{R_WS+3}], s83 offen offset:{1152+256}")
    a(f"buffer_store_short_d16_hi v127, v12, s[{R_WS}:{R_WS+3}], s83 offen offset:{1152+272}")
    a(f"buffer_store_short v15, v12, s[{R_WS}:{R_WS+3}], s83 offen offset:{1152+288}")
    a(f"s_branch {end}")
    a("L_k1_gate:")
    a(f"s_cmp_lg_u32 s{sHP}, 0")
    a(f"s_cbranch_scc1 {end}")
    a(f"s_mov_b32 exec_hi, 0")
    a(f"v_mul_f32 v12, v{vLC+1}, v{LL+12}")
    a(f"v_exp_f32 v12, v12")
    a(f"v_add_f32 v12, 1.0, v12")
    a(f"v_rcp_f32 v12, v12")
    a(f"s_lshl_b32 s83, s80, 7")
    a(f"s_add_u32 s83, s83, {WS_G}")
    a(f"buffer_store_dword v12, v11, s[{R_WS}:{R_WS+3}], s83 offen")
    a(f"s_branch {end}")
    a("L_k1_kvrole:")
    PHK, VIM = 0, 40960
    a("s_barrier")
    a(f"s_lshl_b32 s82, s{sRT}, 5")
    a(f"v_add_u32 v12, s82, v{vR32}")
    a(f"v_mul_u32_u24 v13, 80, v12")
    a(f"v_mul_u32_u24 v14, 40, v{vH}")
    a(f"s_mul_i32 s82, s{sHP}, 20480")
    a(f"v_add3_u32 v13, v13, v14, s82")
    for o in range(2):
        for k in range(4):
            a(f"ds_write_b64 v13, {vr(PH[o]+2*k,2)} offset:{PHK+10240*o+8*k}")
        a(f"ds_write_b32 v13, v{PH[o]+8} offset:{PHK+10240*o+32}")
    a(f"v_mul_u32_u24 v14, 40, v12")
    a(f"s_mul_i32 s82, s{sHP}, 10240")
    a(f"v_add_u32 v14, s82, v14")
    a(f"v_lshl_add_u32 v15, v{vH}, 3, v14")
    for o, X in enumerate((XE, XO)):
        a(f"ds_write_b64 v15, {vr(X,2)} offset:{VIM+5120*o}")
        a(f"ds_write_b64 v15, {vr(X+2,2)} offset:{VIM+5120*o+16}")
    a(f"v_cndmask_b32 v120, v{XC}, v{XC+1}, s[76:77]")
    a(f"v_mov_b32 v121, 0x3f80")
    a(f"v_mul_u32_u24 v15, 5120, v{vH}")
    a(f"v_add_u32 v15, v15, v14")
    a(f"ds_write_b64 v15, v[120:121] offset:{VIM+32}")
    a(f"v_bfe_u32 v12, v{vL}, 2, 2")
    a(f"v_lshl_add_u32 v12, v{vH}, 3, v12")
    a(f"v_bfe_u32 v13, v{vL}, 4, 1")
    a(f"v_and_b32 v14, 3, v{vL}")
    a(f"v_lshl_add_u32 v13, v13, 2, v14")
    a(f"v_and_b32 v14, 1, v13")
    a(f"v_mul_u32_u24 v14, 40, v14")
    a(f"v_lshrrev_b32 v15, 1, v13")
    a(f"v_lshlrev_b32 v15, 3, v15")
    a(f"s_lshl_b32 s82, s{sHP}, 5")
    a(f"v_max_u32 v15, s82, v15")
    a(f"v_mul_u32_u24 v16, 80, v12")
    a(f"s_mul_i32 s82, s{sRT}, 10240")
    a(f"v_add3_u32 v16, v16, v14, v15")
    a(f"v_add_u32 v16, s82, v16")
    a(f"v_min_u32 v13, 4, v13")
    a(f"v_lshlrev_b32 v13, 3, v13")
    a(f"v_mul_u32_u24 v17, 40, v12")
    a(f"s_mul_i32 s82, s{sRT}, 5120")
    a(f"v_add3_u32 v17, v17, v13, s82")
    a("s_waitcnt lgkmcnt(0)")
    a("s_barrier")
    for ks in range(8):
        for u in range(2):
            a(f"ds_read_b64_tr_b16 {vr(144+8*ks+2*u,2)}, v16 offset:{PHK+(16*ks+4*u)*80}")
        for u in range(2):
            a(f"ds_read_b64_tr_b16 {vr(148+8*ks+2*u,2)}, v17 offset:{VIM+(16*ks+4*u)*40}")
        if ks >= 3:
            k2 = ks - 3
            a("s_waitcnt lgkmcnt(12)")
            a(f"v_mfma_f32_32x32x16_bf16 v[96:111], {vr(144+8*k2,4)}, {vr(148+8*k2,4)}, {'0' if k2==0 else 'v[96:111]'}")
    for k2 in (5, 6, 7):
        a(f"s_waitcnt lgkmcnt({4*(7-k2)})")
        a(f"v_mfma_f32_32x32x16_bf16 v[96:111], {vr(144+8*k2,4)}, {vr(148+8*k2,4)}, v[96:111]")
    a(f"s_lshl_b32 s82, s{sI}, 5")
    a(f"s_lshl_b32 s83, s{sG}, 2")
    a(f"s_add_u32 s82, s82, s83")
    a(f"s_add_u32 s82, s82, s{sRT}")
    a(f"s_mul_i32 s82, s82, 2816")
    a(f"s_add_u32 s82, s82, {WS_KVP}")
    a(f"v_mul_u32_u24 v12, 19, v{vH}")
    a(f"v_add_u32 v12, v12, v{vR32}")
    a(f"v_lshlrev_b32 v13, 3, v12")
    a(f"v_lshlrev_b32 v12, 4, v12")
    a(f"s_mov_b32 exec_lo, 0x7ffff")
    a(f"s_mov_b32 exec_hi, 0x7ffff")
    a(f"s_cmp_lg_u32 s{sHP}, 0")
    a("s_cbranch_scc1 L_k1_t1")
    a("s_nop 7")
    for k in range(4):
        a(f"buffer_store_dwordx4 {vr(96+4*k,4)}, v12, s[{R_WS}:{R_WS+3}], s82 offen offset:{608*k}")
    a(f"s_branch {end}")
    a("L_k1_t1:")
    a("s_nop 7")
    a(f"buffer_store_dwordx2 v[96:97], v13, s[{R_WS}:{R_WS+3}], s82 offen offset:2432")
    a(f"{end}:")
    a("s_endpgm")


def attn_iter(a, n, NIT, offK, offV):
    b = n & 1
    c = 80 + 32*b; nx = 80 + 32*(1-b)
    Kn = 20 + 4*(1-b); Kxn = 28 + 2*(1-b)
    Vc = 32 + 8*b; Vp = 32 + 8*(1-b)
    def e(r0, k):
        for j in range(k): a(f"v_exp_f32 v{r0+j}, v{r0+j}")
    def sm(O, V, P): a(f"v_smfmac_f32_32x32x32_bf16 v[{O}:{O+15}], v[{V}:{V+3}], v[{P}:{P+7}], v2")
    last = n == NIT - 1
    e(c, 4)
    if n > 0: sm(64, Vp+4, nx+24)
    a("s_waitcnt lgkmcnt(0)")
    e(c+4, 4)
    if not last: a(f"v_mfma_f32_32x32x4_2b_bf16 v[{nx}:{nx+31}], v[{Kxn}:{Kxn+1}], v[16:17], 0")
    e(c+8, 8)
    sm(48, Vc, c)
    if n + 2 < NIT: a(f"ds_read_b128 v[{20+4*b}:{23+4*b}], v3 offset:{offK}")
    e(c+16, 4)
    sm(48, Vc+4, c+8)
    if n + 2 < NIT: a(f"ds_read_b32 v{28+2*b}, v4 offset:{offK}")
    e(c+20, 4)
    if not last:
        a(f"v_mfma_f32_32x32x16_bf16 v[{nx}:{nx+15}], v[{Kn}:{Kn+3}], v[8:11], v[{nx}:{nx+15}]")
        a(f"ds_read_b128 v[{Vp}:{Vp+3}], v5 offset:{offV}")
    e(c+24, 4)
    sm(64, Vc, c+16)
    if not last: a(f"ds_read_b128 v[{Vp+4}:{Vp+7}], v5 offset:{offV+608}")
    e(c+28, 4)
    if not last: a(f"v_mfma_f32_32x32x16_bf16 v[{nx+16}:{nx+31}], v[{Kn}:{Kn+3}], v[12:15], v[{nx+16}:{nx+31}]")
    else: sm(64, Vc+4, c+24)

def k2(a):
    R_WS = 44
    sW, sRT, sKH, sI, sJ, sR, sH = 48, 49, 50, 51, 52, 53, 54
    sT0, sT1, sT2 = 57, 58, 59
    end = "L_k2_end"
    a("s_cmp_ge_u32 s2, 256")
    a(f"s_cbranch_scc1 {end}")
    a("s_load_dwordx2 s[28:29], s[0:1], 96")
    vL, vH, vR32 = 1, 6, 7
    a(f"v_and_b32 v{vL}, 63, v0")
    a("v_lshrrev_b32 v2, 6, v0")
    a(f"v_readfirstlane_b32 s{sW}, v2")
    a(f"s_lshr_b32 s{sI}, s2, 4")
    a(f"s_and_b32 s{sJ}, s2, 15")
    a(f"s_and_b32 s{sRT}, s{sW}, 3")
    a(f"s_lshr_b32 s{sKH}, s{sW}, 2")
    a(f"s_lshl_b32 s{sR}, s{sI}, 2")
    a(f"s_add_u32 s{sR}, s{sR}, s{sRT}")
    a(f"s_lshl_b32 s{sH}, s{sJ}, 1")
    a(f"s_add_u32 s{sH}, s{sH}, s{sKH}")
    a(f"v_lshrrev_b32 v{vH}, 5, v{vL}")
    a(f"v_and_b32 v{vR32}, 31, v{vL}")
    vL16, vL4 = 18, 19
    a(f"v_lshlrev_b32 v{vL16}, 4, v{vL}")
    a(f"v_lshlrev_b32 v{vL4}, 2, v{vL}")
    a("s_waitcnt lgkmcnt(0)")
    srd(a, R_WS, P_WS, WS_END)
    WS = f"s[{R_WS}:{R_WS+3}]"
    a(f"s_lshl_b32 s{sT0}, s{sR}, 4")
    a(f"s_add_u32 s{sT0}, s{sT0}, s{sJ}")
    a(f"s_mul_i32 s{sT0}, s{sT0}, 2304")
    a(f"s_add_u32 s{sT0}, s{sT0}, {WS_QF}")
    a(f"buffer_load_dwordx4 v[8:11], v{vL16}, {WS}, s{sT0} offen")
    a(f"buffer_load_dwordx4 v[12:15], v{vL16}, {WS}, s{sT0} offen offset:1024")
    a(f"buffer_load_dword v16, v{vL4}, {WS}, s{sT0} offen offset:2048")
    a(f"s_lshl_b32 s{sT0}, s{sW}, 10")
    for m in range(19):
        a(f"s_mov_b32 m0, s{sT0}")
        a(f"buffer_load_dwordx4 v{vL16}, {WS}, s{sT0} offen lds")
        a(f"s_add_u32 s{sT0}, s{sT0}, 8192")
    PHQ, vG, KP = 216, 226, 144
    a(f"s_lshl_b32 s{sT0}, s{sR}, 5")
    a(f"s_add_u32 s{sT0}, s{sT0}, s{sH}")
    a(f"s_mul_i32 s{sT0}, s{sT0}, 2304")
    a(f"s_add_u32 s{sT0}, s{sT0}, {WS_PHIQ}")
    a(f"buffer_load_dwordx4 {vr(PHQ,4)}, v{vL16}, {WS}, s{sT0} offen")
    a(f"buffer_load_dwordx4 {vr(PHQ+4,4)}, v{vL16}, {WS}, s{sT0} offen offset:1024")
    a(f"buffer_load_dword v{PHQ+8}, v{vL4}, {WS}, s{sT0} offen offset:2048")
    a(f"v_lshlrev_b32 v228, 2, v{vR32}")
    a(f"s_lshl_b32 s{sT0}, s{sR}, 7")
    a(f"s_add_u32 s{sT0}, s{sT0}, {WS_G}")
    a(f"buffer_load_dword v{vG}, v228, {WS}, s{sT0} offen")
    a(f"v_subrev_u32 v229, 4, v{vR32}")
    a(f"v_cmp_lt_u32 vcc, 19, v{vR32}")
    a(f"v_cndmask_b32 v229, v{vR32}, v229, vcc")
    a(f"v_min_u32 v229, 18, v229")
    a(f"v_mad_u32_u24 v229, v{vH}, 19, v229")
    a(f"v_lshlrev_b32 v230, 3, v229")
    a(f"v_lshlrev_b32 v229, 4, v229")
    a(f"s_lshl_b32 s{sT0}, s{sRT}, 7")
    a(f"s_add_u32 s{sT0}, s{sT0}, s{sH}")
    a(f"s_mul_i32 s{sT0}, s{sT0}, 2816")
    a(f"s_add_u32 s{sT0}, s{sT0}, {WS_KVP}")
    for p in range(4):
        for k in range(4):
            a(f"buffer_load_dwordx4 {vr(KP+18*p+4*k,4)}, v229, {WS}, s{sT0} offen offset:{608*k}")
        a(f"buffer_load_dwordx2 {vr(KP+18*p+16,2)}, v230, {WS}, s{sT0} offen offset:2432")
        a(f"s_add_u32 s{sT0}, s{sT0}, {32*2816}")
    a("v_mov_b32 v2, 0xdddd")
    a(f"v_mov_b32 v3, v{vL16}")
    a(f"v_lshlrev_b32 v4, 2, v{vR32}")
    a(f"v_add_u32 v4, 1024, v4")
    a(f"v_subrev_u32 v5, 20, v{vR32}")
    a(f"v_cmp_gt_u32 vcc, 8, v5")
    a(f"v_cndmask_b32 v5, 4, 0, vcc")
    a(f"v_cmp_gt_u32 vcc, 19, v{vR32}")
    a(f"v_cndmask_b32 v5, v5, v{vR32}, vcc")
    a(f"v_lshlrev_b32 v5, 4, v5")
    a(f"v_mul_u32_u24 v231, 304, v{vH}")
    a(f"v_add_u32 v5, v5, v231")
    a(f"v_add_u32 v5, 1152, v5")
    a(f"v_mov_b32 v232, v5")
    a("v_mov_b32 v17, 0")
    a("v_mov_b32 v29, 0x3f803f80")
    a("v_mov_b32 v31, 0x3f803f80")
    for r in range(48, 80): a(f"v_mov_b32 v{r}, 0")
    a(f"v_cmp_eq_u32 s[76:77], 1, v{vH}")
    a("s_waitcnt vmcnt(38)")
    a("s_barrier")
    a("ds_read_b128 v[20:23], v3")
    a("ds_read_b32 v28, v4")
    a(f"s_mul_i32 s{sT0}, s{sKH}, {KVT}")
    a(f"v_add_u32 v3, s{sT0}, v3")
    a(f"v_add_u32 v4, s{sT0}, v4")
    a(f"v_add_u32 v5, s{sT0}, v5")
    a("s_waitcnt lgkmcnt(0)")
    a("v_mfma_f32_32x32x16_bf16 v[112:127], v[20:23], v[8:11], 0")
    a("v_mfma_f32_32x32x16_bf16 v[128:143], v[20:23], v[12:15], 0")
    a("v_mfma_f32_32x32x4_2b_bf16 v[112:143], v[28:29], v[16:17], v[112:143]")
    a("ds_read_b128 v[20:23], v3")
    a("ds_read_b32 v28, v4")
    a(f"ds_read_b128 v[24:27], v3 offset:{2*KVT}")
    a(f"ds_read_b32 v30, v4 offset:{2*KVT}")
    a("ds_read_b128 v[32:35], v5")
    a("ds_read_b128 v[36:39], v5 offset:608")
    a("s_waitcnt lgkmcnt(4)")
    a("v_mfma_f32_32x32x16_bf16 v[80:95], v[20:23], v[8:11], 0")
    a("v_mfma_f32_32x32x16_bf16 v[96:111], v[20:23], v[12:15], 0")
    for o in range(2):
        p = 112 + 16*o; m = 233 + o
        a(f"v_max3_f32 v{m}, v{p}, v{p+1}, v{p+2}")
        for k in range(3, 15, 2): a(f"v_max3_f32 v{m}, v{m}, v{p+k}, v{p+k+1}")
        a(f"v_max_f32 v{m}, v{m}, v{p+15}")
    a("v_permlane32_swap_b32 v233, v234")
    a("v_max_f32 v233, v233, v234")
    a("v_sub_f32 v233, 0, v233")
    a("v_and_b32 v234, 0xffff0000, v233")
    a("v_sub_f32 v233, v233, v234")
    a("v_cvt_pk_bf16_f32 v17, v234, v233")
    a("v_mfma_f32_32x32x4_2b_bf16 v[80:111], v[28:29], v[16:17], v[80:111]")
    NIT = 32
    base = 0
    for n in range(NIT):
        if n == 6:
            a("s_waitcnt vmcnt(24)")
            a("s_barrier")
        if (n + 2 - base) * 2 * KVT + 700 > 65535:
            d = (n - base) * 2 * KVT
            for r in (3, 4, 5): a(f"v_add_u32 v{r}, {d}, v{r}")
            base = n
        attn_iter(a, n, NIT, (n + 2 - base) * 2 * KVT, (n + 1 - base) * 2 * KVT)
    a("s_waitcnt vmcnt(0)")
    for k in range(0, 18, 2):
        a(f"v_pk_add_f32 {vr(KP+k,2)}, {vr(KP+k,2)}, {vr(KP+18+k,2)}")
        a(f"v_pk_add_f32 {vr(KP+36+k,2)}, {vr(KP+36+k,2)}, {vr(KP+54+k,2)}")
    for k in range(0, 18, 2):
        a(f"v_pk_add_f32 {vr(KP+k,2)}, {vr(KP+k,2)}, {vr(KP+36+k,2)}")
    a("s_barrier")
    a(f"s_lshl_b32 s{sT0}, s{sW}, 13")
    a(f"v_add_u32 v20, s{sT0}, v{vL16}")
    a(f"v_lshlrev_b32 v21, 3, v{vL}")
    a(f"v_add_u32 v22, s{sT0}, v21")
    for k in range(4): a(f"ds_write_b128 v20, {vr(KP+4*k,4)} offset:{3072+1024*k}")
    a(f"ds_write_b64 v22, {vr(KP+16,2)} offset:7168")
    a(f"s_cmp_eq_u32 s{sKH}, 0")
    a("s_cbranch_scc1 L_k2_kh0")
    for k in range(3): a(f"ds_write_b128 v20, {vr(48+4*k,4)} offset:{1024*k}")
    for k in range(12): a(f"v_mov_b32 v{80+k}, v{64+k}")
    for k in range(4): a(f"v_mov_b32 v{8+k}, v{12+k}")
    a("v_cndmask_b32 v16, 0, v16, s[76:77]")
    a("s_branch L_k2_khd")
    a("L_k2_kh0:")
    for k in range(3): a(f"ds_write_b128 v20, {vr(64+4*k,4)} offset:{1024*k}")
    for k in range(12): a(f"v_mov_b32 v{80+k}, v{48+k}")
    a("v_cndmask_b32 v16, v16, 0, s[76:77]")
    a("L_k2_khd:")
    a(f"s_xor_b32 s{sT1}, s{sT0}, {4<<13}")
    a(f"v_add_u32 v23, s{sT1}, v{vL16}")
    a("s_waitcnt lgkmcnt(0)")
    a("s_barrier")
    for k in range(3): a(f"ds_read_b128 {vr(96+4*k,4)}, v23 offset:{1024*k}")
    for p in range(1, 4):
        a(f"s_xor_b32 s{sT1}, s{sT0}, {p<<13}")
        a(f"v_add_u32 v24, s{sT1}, v{vL16}")
        a(f"v_add_u32 v25, s{sT1}, v21")
        for k in range(4): a(f"ds_read_b128 {vr(KP+18*p+4*k,4)}, v24 offset:{3072+1024*k}")
        a(f"ds_read_b64 {vr(KP+18*p+16,2)}, v25 offset:7168")
        if p == 1:
            a("s_waitcnt lgkmcnt(5)")
            for k in range(0, 12, 2): a(f"v_pk_add_f32 {vr(80+k,2)}, {vr(80+k,2)}, {vr(96+k,2)}")
    a("s_waitcnt lgkmcnt(0)")
    for k in range(0, 18, 2):
        a(f"v_pk_add_f32 {vr(KP+k,2)}, {vr(KP+k,2)}, {vr(KP+18+k,2)}")
        a(f"v_pk_add_f32 {vr(KP+36+k,2)}, {vr(KP+36+k,2)}, {vr(KP+54+k,2)}")
    for k in range(0, 18, 2):
        a(f"v_pk_add_f32 {vr(KP+k,2)}, {vr(KP+k,2)}, {vr(KP+36+k,2)}")
    KA = 164
    for k in range(9): a(f"v_cvt_pk_bf16_f32 v{KA+k}, v{KP+2*k}, v{KP+2*k+1}")
    a(f"v_mov_b32 v{KA+9}, 0")
    a(f"v_mov_b32 v{PHQ+9}, 0")
    OA = 112
    a(f"v_mfma_f32_32x32x16_bf16 {vr(OA,16)}, {vr(KA,4)}, {vr(PHQ,4)}, 0")
    a(f"v_mfma_f32_32x32x16_bf16 {vr(OA,16)}, {vr(KA+4,4)}, {vr(PHQ+4,4)}, {vr(OA,16)}")
    a(f"v_mfma_f32_32x32x8_bf16 {vr(OA,16)}, {vr(KA+8,2)}, {vr(PHQ+8,2)}, {vr(OA,16)}")
    a("L_k2_check:")
    a("v_mov_b32 v92, v90")
    a("v_mov_b32 v93, v90")
    a("v_cndmask_b32 v88, v88, 0, s[76:77]")
    a("v_cndmask_b32 v89, v89, 0, s[76:77]")
    a("v_permlane32_swap_b32 v92, v93")
    a("v_add_f32 v94, |v80|, |v81|")
    for k in range(2, 10): a(f"v_add_f32 v94, v94, |v{80+k}|")
    a(f"s_mov_b32 s{sT1}, {hex(f2u(2.0**-60))}")
    a(f"s_mov_b32 s{sT2}, {hex(f2u(2.0**100))}")
    a(f"v_cmp_lt_f32 vcc, s{sT1}, v92")
    a(f"v_cmp_gt_f32 s[78:79], s{sT2}, v92")
    a(f"s_mov_b32 s{sT1}, 0x7f000000")
    a(f"v_cmp_gt_f32 s[80:81], s{sT1}, v94")
    a("s_and_b64 vcc, vcc, s[78:79]")
    a("s_and_b64 vcc, vcc, s[80:81]")
    a("s_andn2_b64 vcc, exec, vcc")
    a("s_cbranch_scc1 L_k2_fallback")
    a("L_k2_fin:")
    a("v_rcp_f32 v92, v92")
    a(f"v_sub_f32 v93, 1.0, v{vG}")
    a("v_mul_f32 v92, v92, v93")
    for k in range(0, 10, 2): a(f"v_pk_mul_f32 {vr(80+k,2)}, {vr(80+k,2)}, v[92:93] op_sel_hi:[1,0]")
    for k in range(5): a(f"v_cvt_pk_bf16_f32 v{96+k}, v{80+2*k}, v{81+2*k}")
    a(f"v_add_f32 v92, {hex(f2u(1e-6))}, v{OA+10}")
    a("v_rcp_f32 v92, v92")
    a(f"v_mul_f32 v92, v92, v{vG}")
    for k in range(0, 10, 2): a(f"v_pk_mul_f32 {vr(OA+k,2)}, {vr(OA+k,2)}, v[92:93] op_sel_hi:[1,0]")
    for k in range(5): a(f"v_cvt_pk_bf16_f32 v{104+k}, v{OA+2*k}, v{OA+1+2*k}")
    a(f"s_lshr_b32 s{sT0}, s{sH}, 3")
    a(f"s_mul_i32 s{sT0}, s{sT0}, 9")
    a(f"s_mul_i32 s{sT1}, s{sR}, 36")
    a(f"s_add_u32 s{sT0}, s{sT0}, s{sT1}")
    a(f"s_lshl_b32 s{sT0}, s{sT0}, 10")
    a(f"s_add_u32 s{sT0}, s{sT0}, {WS_OF}")
    a(f"s_and_b32 s{sT1}, s{sH}, 7")
    a(f"s_lshl_b32 s{sT1}, s{sT1}, 10")
    a(f"s_add_u32 s{sT1}, s{sT1}, s{sT0}")
    a(f"s_bfe_u32 s{sT2}, s{sH}, 0x10002")
    a(f"s_lshl_b32 s{sT2}, s{sT2}, 9")
    a(f"s_add_u32 s{sT0}, s{sT0}, s{sT2}")
    a(f"s_and_b32 s{sT2}, s{sH}, 3")
    a(f"s_lshl_b32 s{sT2}, s{sT2}, 2")
    a(f"s_add_u32 s{sT0}, s{sT0}, s{sT2}")
    a(f"s_add_u32 s{sT0}, s{sT0}, 8192")
    a(f"buffer_store_dwordx4 v[104:107], v{vL16}, {WS}, s{sT1} offen")
    a(f"s_add_u32 s{sT1}, s{sT1}, {64*36*1024}")
    a(f"buffer_store_dwordx4 v[96:99], v{vL16}, {WS}, s{sT1} offen")
    a("s_mov_b32 exec_hi, 0")
    a(f"buffer_store_dword v108, v{vL16}, {WS}, s{sT0} offen")
    a(f"s_add_u32 s{sT0}, s{sT0}, {64*36*1024}")
    a(f"buffer_store_dword v100, v{vL16}, {WS}, s{sT0} offen")
    a(f"{end}:")
    a("s_endpgm")
    a("L_k2_fallback:")
    a("v_mov_b32 v17, 0")
    a(f"v_lshlrev_b32 v4, 2, v{vR32}")
    a("v_mov_b32 v95, 0xff800000")
    a(f"s_mov_b32 s{sT0}, 0")
    def qk():
        a(f"buffer_load_dwordx4 v[20:23], v{vL16}, {WS}, s{sT0} offen")
        a(f"buffer_load_dword v28, v4, {WS}, s{sT0} offen offset:1024")
        a(f"buffer_load_dwordx4 v[32:35], v232, {WS}, s{sT0} offen")
        a(f"buffer_load_dwordx4 v[36:39], v232, {WS}, s{sT0} offen offset:608")
        a("s_waitcnt vmcnt(0)")
        a("v_mfma_f32_32x32x16_bf16 v[48:63], v[20:23], v[8:11], 0")
        a("v_mfma_f32_32x32x8_bf16 v[48:63], v[28:29], v[16:17], v[48:63]")
    a("L_k2_fb1:")
    qk()
    for k in range(0, 16, 2): a(f"v_max3_f32 v95, v95, v{48+k}, v{49+k}")
    a(f"s_add_u32 s{sT0}, s{sT0}, {KVT}")
    a(f"s_cmp_lt_u32 s{sT0}, {64*KVT}")
    a("s_cbranch_scc1 L_k2_fb1")
    a("v_mov_b32 v94, v95")
    a("v_permlane32_swap_b32 v94, v95")
    a("v_max_f32 v64, v94, v95")
    for r in range(80, 96): a(f"v_mov_b32 v{r}, 0")
    a(f"s_mov_b32 s{sT0}, 0")
    a("L_k2_fb2:")
    qk()
    for k in range(16): a(f"v_sub_f32 v{48+k}, v{48+k}, v64")
    for k in range(16): a(f"v_exp_f32 v{48+k}, v{48+k}")
    a("v_smfmac_f32_32x32x32_bf16 v[80:95], v[32:35], v[48:55], v2")
    a("v_smfmac_f32_32x32x32_bf16 v[80:95], v[36:39], v[56:63], v2")
    a(f"s_add_u32 s{sT0}, s{sT0}, {KVT}")
    a(f"s_cmp_lt_u32 s{sT0}, {64*KVT}")
    a("s_cbranch_scc1 L_k2_fb2")
    a("s_nop 15")
    a("v_mov_b32 v92, v90")
    a("v_mov_b32 v93, v90")
    a("v_permlane32_swap_b32 v92, v93")
    a("s_nop 1")
    a("s_branch L_k2_fin")

def k3(a):
    R_WS, R_WA, R_WB, R_OUT = 44, 32, 36, 40
    sW, sKG, sRT, sR3, sC3 = 48, 49, 50, 51, 52
    sT0, sT1, sT2 = 57, 58, 59
    end = "L_k3_end"
    a("s_cmp_ge_u32 s2, 256")
    a(f"s_cbranch_scc1 {end}")
    load_args(a)
    vL, vH, vR32 = 1, 6, 7
    a(f"v_and_b32 v{vL}, 63, v0")
    a("v_lshrrev_b32 v2, 6, v0")
    a(f"v_readfirstlane_b32 s{sW}, v2")
    a(f"s_and_b32 s{sT0}, s2, 7")
    a(f"s_lshr_b32 s{sT1}, s2, 3")
    a(f"s_lshl_b32 s{sR3}, s{sT0}, 2")
    a(f"s_and_b32 s{sT2}, s{sT1}, 3")
    a(f"s_or_b32 s{sR3}, s{sR3}, s{sT2}")
    a(f"s_lshr_b32 s{sC3}, s{sT1}, 2")
    a(f"s_and_b32 s{sKG}, s{sW}, 3")
    a(f"s_lshr_b32 s{sRT}, s{sW}, 2")
    a(f"v_lshrrev_b32 v{vH}, 5, v{vL}")
    a(f"v_and_b32 v{vR32}, 31, v{vL}")
    a(f"v_lshlrev_b32 v8, 4, v{vL}")
    for m in range(11):
        a(f"v_add_u32 v10, {512*m}, v0")
        a(f"v_mul_u32_u24 v11, 7282, v10")
        a(f"v_lshrrev_b32 v11, 16, v11")
        a(f"v_mul_u32_u24 v11, 1008, v11")
        a(f"v_lshl_add_u32 v{16+m}, v10, 4, v11")
    a(f"v_bfe_u32 v10, v{vL}, 2, 2")
    a(f"v_bfe_u32 v11, v{vL}, 4, 1")
    a(f"v_and_b32 v12, 3, v{vL}")
    a(f"v_lshl_add_u32 v11, v11, 2, v12")
    a(f"v_lshlrev_b32 v12, 3, v11")
    a(f"v_min_u32 v13, 1, v11")
    a(f"v_lshlrev_b32 v13, 3, v13")
    a(f"v_add_u32 v13, 128, v13")
    a(f"s_mul_i32 s{sT0}, s{sKG}, {144*144}")
    a(f"v_add_u32 v12, s{sT0}, v12")
    a(f"v_add_u32 v13, s{sT0}, v13")
    a(f"v_lshl_add_u32 v14, v{vH}, 2, v10")
    a(f"v_mul_u32_u24 v14, 144, v14")
    a(f"v_add_u32 v28, v14, v12"); a(f"v_add_u32 v29, v14, v13")
    a(f"v_mul_u32_u24 v15, 72, v{vH}")
    a(f"v_add_u32 v14, v15, v10")
    a(f"v_mul_u32_u24 v14, 144, v14")
    a(f"v_add_u32 v30, v14, v12"); a(f"v_add_u32 v31, v14, v13")
    a(f"v_lshrrev_b32 v14, 1, v10")
    a(f"v_lshl_add_u32 v14, v14, 4, v10")
    a(f"v_add_u32 v14, v15, v14")
    a(f"v_mul_u32_u24 v14, 144, v14")
    a(f"v_add_u32 v32, v14, v12"); a(f"v_add_u32 v33, v14, v13")
    a("s_waitcnt lgkmcnt(0)")
    srd(a, R_WS, P_WS, WS_END)
    srd(a, R_WA, P_WOA, 576*1152)
    srd(a, R_WB, P_WOB, 576*1152)
    srd(a, R_OUT, P_OUT, 2048*1152)
    WS = f"s[{R_WS}:{R_WS+3}]"
    a(f"s_mul_i32 s60, s{sC3}, 144")
    def dma(R):
        a(f"s_lshl_b32 s{sT0}, s{sW}, 10")
        for m in range(11):
            a(f"s_mov_b32 m0, s{sT0}")
            a(f"buffer_load_dwordx4 v{16+m}, s[{R}:{R+3}], s60 offen lds")
            a(f"s_add_u32 s{sT0}, s{sT0}, 8192")
    OFR = 64
    a(f"s_lshl_b32 s{sT1}, s{sR3}, 1")
    a(f"s_add_u32 s{sT1}, s{sT1}, s{sRT}")
    a(f"s_mul_i32 s{sT1}, s{sT1}, 36")
    a(f"s_mul_i32 s{sT2}, s{sKG}, 9")
    a(f"s_add_u32 s{sT1}, s{sT1}, s{sT2}")
    a(f"s_lshl_b32 s{sT1}, s{sT1}, 10")
    a(f"s_add_u32 s{sT1}, s{sT1}, {WS_OF}")
    dma(R_WA)
    for br in range(2):
        for t in range(9):
            a(f"buffer_load_dwordx4 {vr(OFR+36*br+4*t,4)}, v8, {WS}, s{sT1} offen")
            a(f"s_add_u32 s{sT1}, s{sT1}, {1024 if t < 8 else 64*36*1024 - 8*1024}")
    ACC = 144; WF = (36, 48)
    def wreads(br, t):
        f = WF[t & 1]
        for ct in range(3):
            for u in range(2):
                if t < 8:
                    reg = 28 + (ct == 2); off = (18*t + (2 if (br == 0 and t & 1) else 0) + 8*u) * 144
                else:
                    reg = 30 + 2*br + (ct == 2); off = (36*u + 16) * 144
                if ct == 1: off += 64
                a(f"ds_read_b64_tr_b16 {vr(f+4*ct+2*u,2)}, v{reg} offset:{off}")
    for br in range(2):
        if br == 0:
            a("s_waitcnt vmcnt(9)")
        else:
            a("s_barrier")
            dma(R_WB)
            a("s_waitcnt vmcnt(0)")
        a("s_barrier")
        wreads(br, 0)
        for t in range(9):
            if t < 8:
                wreads(br, t + 1)
                a("s_waitcnt lgkmcnt(6)")
            else:
                a("s_waitcnt lgkmcnt(0)")
            f = WF[t & 1]
            for ct in range(3):
                c = "0" if (br == 0 and t == 0) else vr(ACC+16*ct, 16)
                a(f"v_mfma_f32_32x32x16_bf16 {vr(ACC+16*ct,16)}, {vr(f+4*ct,4)}, {vr(OFR+36*br+4*t,4)}, {c}")
    a("s_barrier")
    S = 304
    a(f"s_lshl_b32 s{sT0}, s{sKG}, 1")
    a(f"s_add_u32 s{sT0}, s{sT0}, s{sRT}")
    a(f"s_mul_i32 s{sT0}, s{sT0}, {32*S}")
    a(f"v_mul_u32_u24 v10, {S}, v{vR32}")
    a(f"v_lshl_add_u32 v10, v{vH}, 4, v10")
    a(f"v_add_u32 v10, s{sT0}, v10")
    for ct in range(3):
        for m in range(4 if ct < 2 else 1):
            a(f"ds_write_b128 v10, {vr(ACC+16*ct+4*m,4)} offset:{(32*ct+8*m)*4}")
    a(f"s_mul_i32 s{sT1}, s{sR3}, {64*1152}")
    a(f"s_add_u32 s{sT1}, s{sT1}, s60")
    a("s_waitcnt lgkmcnt(0)")
    a("s_barrier")
    for m in range(2):
        if m == 1:
            a(f"s_cmp_lg_u32 s{sW}, 0")
            a(f"s_cbranch_scc1 {end}")
        a(f"v_add_u32 v10, {512*m}, v0")
        a(f"v_mul_u32_u24 v11, 7282, v10")
        a(f"v_lshrrev_b32 v11, 16, v11")
        a(f"v_mul_u32_u24 v11, {S-288}, v11")
        a(f"v_lshl_add_u32 v11, v10, 5, v11")
        for kg in range(4):
            a(f"ds_read_b128 {vr(64+8*kg,4)}, v11 offset:{kg*64*S}")
            a(f"ds_read_b128 {vr(68+8*kg,4)}, v11 offset:{kg*64*S+16}")
        a("s_waitcnt lgkmcnt(0)")
        for k in range(0, 8, 2):
            a(f"v_pk_add_f32 {vr(64+k,2)}, {vr(64+k,2)}, {vr(72+k,2)}")
            a(f"v_pk_add_f32 {vr(80+k,2)}, {vr(80+k,2)}, {vr(88+k,2)}")
        for k in range(0, 8, 2):
            a(f"v_pk_add_f32 {vr(64+k,2)}, {vr(64+k,2)}, {vr(80+k,2)}")
        for k in range(4): a(f"v_cvt_pk_bf16_f32 v{96+4*m+k}, v{64+2*k}, v{65+2*k}")
        a(f"buffer_store_dwordx4 {vr(96+4*m,4)}, v{16+m}, s[{R_OUT}:{R_OUT+3}], s{sT1} offen")
    a(f"{end}:")
    a("s_endpgm")

KERNELS = [("k1_kernel", k1, 256, 512, 4*SLOT + 2048), ("k2_kernel", k2, 256, 512, 155648), ("k3_kernel", k3, 256, 512, 90112)]

def build(kernels, path):
    hdr = open("cdna_kernels/" + NAME + ".s.ref").read().split("; Override launch")[0]
    txt = hdr
    for name, fn, grid, block, lds in kernels:
        txt += f"; @launch kernel={name} grid=({grid},1,1) block=({block},1,1) lds={lds}\n"
    txt += '.amdgcn_target "amdgcn-amd-amdhsa--gfx950"\n.text\n'
    kds = '.section .rodata,"a"\n'
    done = set()
    for name, fn, grid, block, lds in kernels:
        if name in done: continue
        done.add(name)
        a = Asm(); a.uid = 1000 * len(done)
        fn(a)
        a.fix_hazards(verbose='-v' in sys.argv)
        mv, ms, ma = a.max_regs()
        acc = (mv + 1 + 3) // 4 * 4
        nfv = acc + ma + 1 if ma >= 0 else mv + 1
        txt += f".globl {name}\n.p2align 8\n.type {name},@function\n{name}:\n" + a.text()
        kds += f""".p2align 6
.amdhsa_kernel {name}
  .amdhsa_next_free_vgpr {nfv}
  .amdhsa_next_free_sgpr {ms+1}
  .amdhsa_accum_offset {acc}
  .amdhsa_group_segment_fixed_size 0
  .amdhsa_kernarg_size 104
  .amdhsa_user_sgpr_count 2
  .amdhsa_user_sgpr_kernarg_segment_ptr 1
  .amdhsa_system_sgpr_workgroup_id_x 1
  .amdhsa_float_denorm_mode_32 3
.end_amdhsa_kernel
"""
        print(f"{name}: vgpr {mv+1} sgpr {ms+1} agpr {ma+1} instrs {sum(1 for x in a.ins if x.mn)}")
    open(path, "w").write(txt + kds)

if __name__ == "__main__":
    build(KERNELS, "m1.s")
```

```python
import sys, subprocess

HDR = """.amdgcn_target "amdgcn-amd-amdhsa--gfx950"
.text
"""
def kern(name, body, iters=200, pre="", vgpr=128, alt=None):
    s = f"""
.globl {name}
.p2align 8
.type {name},@function
{name}:
    s_load_dwordx2 s[4:5], s[0:1], 0
    v_lshrrev_b32 v1, 6, v0
    s_nop 0
    v_readfirstlane_b32 s20, v1
    s_waitcnt lgkmcnt(0)
    s_mov_b32 s8, s4
    s_mov_b32 s9, s5
    s_mov_b32 s10, 0x1000000
    s_mov_b32 s11, 0x00020000
"""
    for i in range(2, vgpr):
        s += f"    v_mov_b32 v{i}, 0\n"
    s += pre + "\n"
    s += f"""
    s_barrier
    s_mov_b32 s12, {iters}
    s_memtime s[14:15]
    s_waitcnt lgkmcnt(0)
"""
    if alt is not None:
        s += f"""
    s_and_b32 s21, s20, 4
    s_cmp_eq_u32 s21, 0
    s_cbranch_scc0 {name}_alt
"""
    s += f"""
.p2align 6
{name}_loop:
{body}
    s_sub_u32 s12, s12, 1
    s_cmp_lg_u32 s12, 0
    s_cbranch_scc1 {name}_loop
    s_branch {name}_done
"""
    if alt is not None:
        s += f"""
.p2align 6
{name}_alt:
{alt}
    s_sub_u32 s12, s12, 1
    s_cmp_lg_u32 s12, 0
    s_cbranch_scc1 {name}_alt
"""
    s += f"""
{name}_done:
    s_nop 15
    s_nop 15
    s_memtime s[16:17]
    s_waitcnt lgkmcnt(0)
    s_sub_u32 s16, s16, s14
    v_mov_b32 v2, s16
    s_lshl_b32 s3, s2, 4
    s_add_u32 s3, s3, s20
    s_lshl_b32 s3, s3, 2
    v_mov_b32 v3, s3
    v_and_b32 v4, 63, v0
    v_cmp_eq_u32 vcc, 0, v4
    s_and_saveexec_b64 s[18:19], vcc
    buffer_store_dword v2, v3, s[8:11], 0 offen
    s_waitcnt vmcnt(0)
    s_endpgm
"""
    kd = f"""
.amdhsa_kernel {name}
  .amdhsa_next_free_vgpr {vgpr}
  .amdhsa_next_free_sgpr 64
  .amdhsa_accum_offset {vgpr}
  .amdhsa_group_segment_fixed_size 0
  .amdhsa_kernarg_size 8
  .amdhsa_user_sgpr_count 2
  .amdhsa_user_sgpr_kernarg_segment_ptr 1
  .amdhsa_system_sgpr_workgroup_id_x 1
.end_amdhsa_kernel
"""
    md = f"""  - .name: {name}
    .symbol: {name}.kd
    .kernarg_segment_size: 8
    .kernarg_segment_align: 8
    .group_segment_fixed_size: 0
    .private_segment_fixed_size: 0
    .wavefront_size: 64
    .sgpr_count: 64
    .vgpr_count: {vgpr}
    .max_flat_workgroup_size: 1024
    .args:
      - {{.name: kernargs, .size: 8, .offset: 0, .value_kind: by_value}}
"""
    return s, kd, md

def build(kerns, out):
    txt = HDR
    kds = '.section .rodata,"a"\n'
    mds = "\n.amdgpu_metadata\n---\namdhsa.version: [1, 2]\namdhsa.kernels:\n"
    for (s, kd, md) in kerns:
        txt += s
        kds += ".p2align 6\n" + kd
        mds += md
    mds += "...\n.end_amdgpu_metadata\n"
    open(out + ".s", "w").write(txt + kds + mds)
    r = subprocess.run(["clang", "-x", "assembler", "-target", "amdgcn-amd-amdhsa", "-mcpu=gfx950", out + ".s", "-o", out + ".co"], capture_output=True, text=True)
    if r.returncode != 0:
        print(r.stderr[:5000]); sys.exit(1)
```

```python
from mbgen import HDR, build
name = "fetch"
s = f".globl {name}\n.p2align 8\n.type {name},@function\n{name}:\n"
s += "    s_load_dwordx2 s[4:5], s[0:1], 0\n"
for k in range(24):
    s += f"    s_memtime s[{16+2*k}:{17+2*k}]\n" + "    v_mov_b32 v2, v3\n" * (14 if k else 12)
s += "    s_waitcnt lgkmcnt(0)\n    s_memtime s[64:65]\n    s_waitcnt lgkmcnt(0)\n"
s += "    s_mov_b32 s8, s4\n    s_mov_b32 s9, s5\n    s_mov_b32 s10, 0x1000000\n    s_mov_b32 s11, 0x00020000\n"
for k in range(25):
    s += f"    v_writelane_b32 v4, s{16+2*k}, {k}\n"
s += "    v_and_b32 v5, 63, v0\n    v_lshlrev_b32 v5, 2, v5\n    s_lshl_b32 s3, s2, 8\n    v_cmp_gt_u32 vcc, 64, v0\n    s_and_saveexec_b64 s[12:13], vcc\n    s_cbranch_execz Lx\n    buffer_store_dword v4, v5, s[8:11], s3 offen\n    s_waitcnt vmcnt(0)\nLx:\n    s_endpgm\n"
kd = f"""
.amdhsa_kernel {name}
  .amdhsa_next_free_vgpr 16
  .amdhsa_next_free_sgpr 80
  .amdhsa_accum_offset 16
  .amdhsa_group_segment_fixed_size 0
  .amdhsa_kernarg_size 8
  .amdhsa_user_sgpr_count 2
  .amdhsa_user_sgpr_kernarg_segment_ptr 1
  .amdhsa_system_sgpr_workgroup_id_x 1
.end_amdhsa_kernel
"""
md = f"""  - .name: {name}
    .symbol: {name}.kd
    .kernarg_segment_size: 8
    .kernarg_segment_align: 8
    .group_segment_fixed_size: 0
    .private_segment_fixed_size: 0
    .wavefront_size: 64
    .sgpr_count: 80
    .vgpr_count: 16
    .max_flat_workgroup_size: 1024
    .args:
      - {{.name: kernargs, .size: 8, .offset: 0, .value_kind: by_value}}
"""
build([(s, kd, md)], "mb29")
```
